```python
import torch

def _softmax(x, axis=-1):
    return torch.softmax(x, dim=axis)
def _gelu(x):
    return torch.nn.functional.gelu(x, approximate="tanh")
def _silu(x):
    return torch.nn.functional.silu(x)
def _sigmoid(x):
    return torch.sigmoid(x)
def _layernorm(x, axis=-1, eps=1e-5):
    m = x.mean(dim=axis, keepdim=True)
    v = x.var(dim=axis, keepdim=True, unbiased=False)
    return (x - m) / torch.sqrt(v + eps)
def _scatter_add(tgt, idx, src, axis=0):
    return tgt.clone().index_add_(axis, idx, src)
def _segment_sum(src, seg, n):
    out = torch.zeros((n,) + src.shape[1:], dtype=src.dtype)
    return out.index_add_(0, seg, src)
def _pad(x, pw):
    flat = tuple(v for pair in reversed(pw) for v in pair)
    return torch.nn.functional.pad(x, flat)

kernel_name = 'standalone__paged_block_table_kv_pagedattention__sampling'

def setup_inputs():

    _w = (lambda a: (lambda t: t.to(torch.bfloat16) if t.is_floating_point() else t)(torch.as_tensor(a)))
    B, Hq, Hkv, Sq, Skv, D = 32, 32, 16, 16, 2048, 128
    bs = 16
    nbps = max(1, Skv // bs)
    num_phys = B * nbps + 4
    bt = torch.randperm(num_phys)[: B * nbps].reshape(B, nbps).to(torch.int64)
    cl = (nbps * bs - (torch.arange(1, B + 1, dtype=torch.int64) * 2654435761) % max(1, nbps * bs // 2)).to(torch.int64)
    return {
        "q": _w((lambda *s: torch.randn(*s, dtype=torch.bfloat16) * 0.8)(B, Hq, Sq, D)),
        "k_cache": _w((lambda *s: torch.randn(*s, dtype=torch.bfloat16) * 0.8)(num_phys, bs, Hkv, D)),
        "v_cache": _w((lambda *s: torch.randn(*s, dtype=torch.bfloat16) * 0.05)(num_phys, bs, Hkv, D)),
        "block_table": _w(bt),
        "context_lens": _w(cl),
    }

def reference(q, k_cache, v_cache, block_table, context_lens):
    B, Hq, Sq, D = q.shape
    bs = k_cache.shape[1]
    Hkv = k_cache.shape[2]
    nbps = block_table.shape[1]
    Skv = nbps * bs
    bt = block_table.reshape(-1)
    k = (lambda x, *d: x.permute(*d))(k_cache[bt].reshape(B, Skv, Hkv, D), 0, 2, 1, 3)
    v = (lambda x, *d: x.permute(*d))(v_cache[bt].reshape(B, Skv, Hkv, D), 0, 2, 1, 3)
    g = Hq // Hkv
    qg = q.reshape(B, Hkv, g, Sq, D)
    scores = torch.einsum("bhgqd,bhkd->bhgqk", qg, k) * (D ** -0.5)
    pos = torch.arange(Skv)
    msk = pos[None, :] < context_lens[:, None]
    scores = torch.where(msk[:, None, None, None, :], scores, -1e9)
    p = _softmax(scores, axis=-1)
    out = torch.einsum("bhgqk,bhkd->bhgqd", p, v)
    return out.reshape(B, Hq, Sq, D)
```

```python
import argparse
import math
import struct
import sys

NAME = "standalone__paged_block_table_kv_pagedattention__sampling"

HEADER = """; Kernarg layout for this problem (64 bytes, ptrs only, base s[0:1]):
"""


def f32bits(x):
    return struct.unpack("<I", struct.pack("<f", x))[0]


def pairing():
    cl = [2048 - ((i * 2654435761) % 1024) for i in range(1, 33)]
    order = sorted(range(32), key=lambda i: (-cl[i], i))
    return [(order[p], order[31 - p]) for p in range(16)]


class G:
    def __init__(self, a):
        self.a = a
        self.L = []

    def e(self, s=""):
        self.L.append("    " + s if s and not s.endswith(":") else s)

    def c(self, s):
        self.L.append("    ; " + s)


def gen(a):
    g = G(a)
    e, c = g.e, g.c
    NS = a.ns
    RB = NS * 8192
    XOFF = 4 * RB
    STAT = XOFF + 16384
    LDS = STAT + 4096
    assert LDS <= 163840, LDS
    pol = (" " + a.pol) if a.pol else ""

    vKoff = 4
    vVoff = 8
    vKrd = 12
    vLane16 = 13
    vLane8 = 14
    vH4 = 15
    vKa = 16
    vVrd = 24
    vVa = 28
    vBT1 = 32
    vBT2 = 34
    vM = 36
    vL = 37
    vT0, vT1 = 38, 39
    vP = 40
    vS = 48
    vO = 64
    vQ1 = 128
    vQ2 = 160
    vK = 192
    vV = 224
    sQ, sKp, sVp, sBT, sCL, sOut, sDbg, sWs = 4, 6, 8, 10, 12, 14, 16, 18
    srdA = 20
    srdB = 24
    srdQ = 28
    srdO = 32
    sW, sH, sB1, sB2 = 36, 37, 38, 39
    sCl1, sCl2, sT1, sT2 = 40, 41, 42, 43
    sG, sLeft, sSw, sPG = 44, 45, 46, 47
    sPEnd, sSlot, sRing0, sRingEnd = 48, 49, 50, 51
    sOff0, sOff1, sNr0, sNr1 = 52, 53, 54, 55
    sC = 56
    sN1, sHasX = 57, 58
    sZ1, sZ2 = 59, 60
    sN = 61
    sKb = 62
    sVb = 64
    t0, t1, t2, t3, t4, t5 = 66, 67, 68, 69, 70, 71
    sValid = 72
    sTs = 76
    sFirst = 84

    def vr(b, n):
        return f"v[{b}:{b+n-1}]"

    def sr(b, n):
        return f"s[{b}:{b+n-1}]"

    e(f"{NAME}_kernel:")
    e("s_cmp_ge_u32 s2, 256")
    e("s_cbranch_scc1 L_end")
    e(f"s_load_dwordx16 s[4:19], s[0:1], 0")
    if a.diag:
        e(f"s_memrealtime {sr(sTs,2)}")
    e("v_lshrrev_b32 v1, 6, v0")
    e("v_and_b32 v0, 63, v0")
    e(f"v_readfirstlane_b32 s{sW}, v1")
    if a.map == 0:
        e(f"s_and_b32 s{sH}, s2, 15")
        e(f"s_lshr_b32 s{t0}, s2, 4")
    else:
        e(f"s_lshr_b32 s{sH}, s2, 4")
        e(f"s_and_b32 s{t0}, s2, 15")
    pr = pairing()
    w1 = [sum(pr[4 * i + j][0] << (8 * j) for j in range(4)) for i in range(4)]
    w2 = [sum(pr[4 * i + j][1] << (8 * j) for j in range(4)) for i in range(4)]
    e(f"s_and_b32 s{t1}, s{t0}, 7")
    e(f"s_lshl_b32 s{t1}, s{t1}, 3")
    e(f"s_cmp_lt_u32 s{t0}, 8")
    e(f"s_cselect_b32 s{t2}, {w1[0]:#x}, 0")
    e(f"s_cselect_b32 s{t3}, {w1[1]:#x}, 0")
    e(f"s_cselect_b32 s{t4}, {w2[0]:#x}, 0")
    e(f"s_cselect_b32 s{t5}, {w2[1]:#x}, 0")
    e(f"s_cselect_b32 s{t2}, s{t2}, {w1[2]:#x}")
    e(f"s_cselect_b32 s{t3}, s{t3}, {w1[3]:#x}")
    e(f"s_cselect_b32 s{t4}, s{t4}, {w2[2]:#x}")
    e(f"s_cselect_b32 s{t5}, s{t5}, {w2[3]:#x}")
    e(f"s_lshr_b64 {sr(t2,2)}, {sr(t2,2)}, s{t1}")
    e(f"s_lshr_b64 {sr(t4,2)}, {sr(t4,2)}, s{t1}")
    e(f"s_and_b32 s{sB1}, s{t2}, 31")
    e(f"s_and_b32 s{sB2}, s{t4}, 31")
    e(f"v_lshlrev_b32 v{vLane16}, 4, v0")
    e(f"v_lshlrev_b32 v{vLane8}, 3, v0")
    e("v_lshrrev_b32 v1, 5, v0")
    e(f"v_lshlrev_b32 v{vH4}, 2, v1")
    e("v_and_b32 v2, 31, v0")
    e("v_lshlrev_b32 v3, 8, v2")
    e("v_lshl_add_u32 v3, v1, 4, v3")
    e(f"s_lshl_b32 s{t0}, s{sB1}, 9")
    e(f"s_lshl_b32 s{t1}, s{sB2}, 9")
    e(f"v_add_u32 v{vT0}, s{t0}, v{vLane8}")
    e(f"v_add_u32 v{vT1}, s{t1}, v{vLane8}")
    e(f"s_lshl_b32 s{t2}, s{sB1}, 2")
    e(f"s_lshl_b32 s{t3}, s{sB2}, 2")
    e(f"s_lshl_b32 s{t4}, s{sH}, 13")
    e(f"s_lshl_b32 s{t0}, s{sB1}, 17")
    e(f"s_lshl_b32 s{t1}, s{sB2}, 17")
    e(f"s_add_u32 s{sB1}, s{t0}, s{t4}")
    e(f"s_add_u32 s{sB2}, s{t1}, s{t4}")
    e(f"s_mov_b32 s{srdQ+2}, 0x400000")
    e(f"s_mov_b32 s{srdQ+3}, 0x20000")
    e(f"s_mov_b32 s{srdO+2}, 0x400000")
    e(f"s_mov_b32 s{srdO+3}, 0x20000")
    e(f"s_mov_b32 s{srdA+2}, 0")
    e(f"s_mov_b32 s{srdB+2}, 0")
    e(f"s_mov_b32 s{sOff0}, 0")
    e(f"s_mov_b32 s{sOff1}, 0")
    e(f"s_mov_b32 s{srdA+3}, 0x20000")
    e(f"s_mov_b32 s{srdB+3}, 0x20000")
    e(f"s_lshl_b32 s{t4}, s{sH}, 8")
    e("s_waitcnt lgkmcnt(0)")
    e(f"s_load_dword s{sCl1}, {sr(sCL,2)}, s{t2}")
    e(f"s_load_dword s{sCl2}, {sr(sCL,2)}, s{t3}")
    e(f"global_load_dwordx2 {vr(vBT1,2)}, v{vT0}, {sr(sBT,2)}")
    e(f"global_load_dwordx2 {vr(vBT2,2)}, v{vT1}, {sr(sBT,2)}")
    e(f"s_mov_b32 s{srdQ}, s{sQ}")
    e(f"s_mov_b32 s{srdQ+1}, s{sQ+1}")
    e(f"s_mov_b32 s{srdO}, s{sOut}")
    e(f"s_mov_b32 s{srdO+1}, s{sOut+1}")
    for j in range(8):
        e(f"buffer_load_dwordx4 {vr(vQ1+4*j,4)}, v3, {sr(srdQ,4)}, s{sB1} offen offset:{32*j}")
    for j in range(8):
        e(f"buffer_load_dwordx4 {vr(vQ2+4*j,4)}, v3, {sr(srdQ,4)}, s{sB2} offen offset:{32*j}")
    e(f"s_add_u32 s{sKb}, s{sKp}, s{t4}")
    e(f"s_addc_u32 s{sKb+1}, s{sKp+1}, 0")
    e(f"s_add_u32 s{sVb}, s{sVp}, s{t4}")
    e(f"s_addc_u32 s{sVb+1}, s{sVp+1}, 0")
    e(f"s_mov_b32 s{sC}, {f32bits(math.log2(math.e) / math.sqrt(128.0)):#x}")
    e(f"s_mul_i32 s{sRing0}, s{sW}, {RB}")
    e(f"s_add_u32 s{sRingEnd}, s{sRing0}, {RB}")
    e("v_and_b32 v3, 15, v0")
    e(f"v_xor_b32 v{vT0}, v1, v3")
    e(f"v_lshlrev_b32 v{vT0}, 4, v{vT0}")
    e(f"v_lshl_add_u32 v{vKrd}, v2, 8, v{vT0}")
    e("v_lshrrev_b32 v2, 4, v0")
    for k in range(4):
        e(f"v_add_u32 v{vT0}, {4*k}, v2")
        e(f"v_xor_b32 v{vT1}, v3, v{vT0}")
        e(f"v_lshlrev_b32 v{vT1}, 4, v{vT1}")
        e(f"v_lshl_add_u32 v{vKoff+k}, v{vT0}, 12, v{vT1}")
        e(f"v_lshlrev_b32 v{vT1}, 2, v2")
        e(f"v_xor_b32 v{vT1}, v3, v{vT1}")
        e(f"v_lshlrev_b32 v{vT1}, 4, v{vT1}")
        e(f"v_lshl_add_u32 v{vVoff+k}, v{vT0}, 12, v{vT1}")
        if k:
            e(f"v_subrev_u32 v{vKoff+k}, {1024*k}, v{vKoff+k}")
            e(f"v_subrev_u32 v{vVoff+k}, {1024*k}, v{vVoff+k}")
    e(f"v_bfe_u32 v{vT0}, v0, 2, 2")
    e(f"v_add_u32 v{vT1}, v{vH4}, v{vT0}")
    e(f"v_lshlrev_b32 v{vVa}, 8, v{vT1}")
    e("v_and_b32 v2, 1, v2")
    e(f"v_lshl_add_u32 v{vVa}, v2, 5, v{vVa}")
    e("v_and_b32 v2, 3, v0")
    e(f"v_lshl_add_u32 v{vVa}, v2, 3, v{vVa}")
    for k in range(4):
        e(f"s_add_u32 s{t0}, s{sW}, {k}")
        e(f"s_and_b32 s{t0}, s{t0}, 3")
        e(f"v_xor_b32 v{vT1}, s{t0}, v{vT0}")
        e(f"v_lshl_add_u32 v{vVrd+k}, v{vT1}, 6, v{vVa}")
    e(f"v_mov_b32 v{vM}, 0xff800000")
    e(f"v_mov_b32 v{vL}, 0")
    for i in range(64):
        e(f"v_mov_b32 v{vO+i}, 0")
    e(f"s_lshl_b32 s{t0}, s{sW}, 9")
    e(f"s_add_u32 s{t0}, s{t0}, {STAT}")
    e(f"v_add_u32 v{vT0}, s{t0}, v{vLane8}")
    e(f"ds_write_b64 v{vT0}, {vr(vM,2)}")
    e(f"ds_write_b64 v{vT0}, {vr(vM,2)} offset:2048")
    e("s_waitcnt lgkmcnt(0)")
    for cl, z, T in ((sCl1, sZ1, sT1), (sCl2, sZ2, sT2)):
        e(f"s_cmp_lt_i32 s{cl}, 1")
        e(f"s_cselect_b32 s{z}, 1, 0")
        e(f"s_cselect_b32 s{cl}, 2048, s{cl}")
        e(f"s_min_u32 s{cl}, s{cl}, 2048")
        e(f"s_add_u32 s{T}, s{cl}, 31")
        e(f"s_lshr_b32 s{T}, s{T}, 5")
    e(f"s_add_u32 s{t0}, s{sT1}, s{sT2}")
    e(f"s_mul_i32 s{t1}, s{t0}, s{sW}")
    e(f"s_lshr_b32 s{sG}, s{t1}, 2")
    e(f"s_add_u32 s{t1}, s{t1}, s{t0}")
    e(f"s_lshr_b32 s{sPEnd}, s{t1}, 2")
    e(f"s_sub_u32 s{sLeft}, s{sPEnd}, s{sG}")
    e(f"s_mov_b32 s{sN}, s{sLeft}")
    e(f"s_mov_b32 s{sPG}, s{sG}")
    e(f"s_mov_b32 s{sN1}, 0")
    for w in range(3):
        e(f"s_mul_i32 s{t1}, s{t0}, {w+1}")
        e(f"s_lshr_b32 s{t1}, s{t1}, 2")
        e(f"s_cmp_le_u32 s{t1}, s{sT1}")
        e(f"s_addc_u32 s{sN1}, s{sN1}, 0")
    e(f"s_mul_i32 s{t1}, s{t0}, s{sN1}")
    e(f"s_lshr_b32 s{t1}, s{t1}, 2")
    e(f"s_cmp_lt_u32 s{t1}, s{sT1}")
    e(f"s_cselect_b32 s{sHasX}, 1, 0")
    e(f"s_max_u32 s{sSw}, s{sT1}, s{sG}")
    e(f"s_mov_b32 s{sSlot}, s{sRing0}")
    e(f"s_mov_b32 s{sFirst}, 1")
    e("s_waitcnt vmcnt(16)")
    for r in (vBT1, vBT1 + 1, vBT2, vBT2 + 1):
        e(f"v_lshlrev_b32 v{r}, 16, v{r}")

    uid = [0]

    def issue(kind, slot_sgpr):
        uid[0] += 1
        lab = f"L_skip{uid[0]}"
        e(f"s_cmp_ge_u32 s{sPG}, s{sPEnd}")
        e(f"s_cbranch_scc1 {lab}")
        if kind == "K":
            e(f"s_sub_u32 s{t0}, s{sPG}, s{sT1}")
            e(f"v_readlane_b32 s{t1}, v{vBT1}, s{sPG}")
            e(f"v_readlane_b32 s{t2}, v{vBT1+1}, s{sPG}")
            e(f"v_readlane_b32 s{t3}, v{vBT2}, s{t0}")
            e(f"v_readlane_b32 s{t4}, v{vBT2+1}, s{t0}")
            e(f"s_cmp_lt_u32 s{sPG}, s{sT1}")
            e(f"s_cselect_b32 s{t0}, s{sPG}, s{t0}")
            e(f"s_cselect_b32 s{t5}, s{sCl1}, s{sCl2}")
            e(f"s_cselect_b32 s{sOff0}, s{t1}, s{t3}")
            e(f"s_cselect_b32 s{sOff1}, s{t2}, s{t4}")
            e(f"s_lshl_b32 s{t0}, s{t0}, 5")
            e(f"s_sub_u32 s{t0}, s{t5}, s{t0}")
            e(f"s_min_u32 s{sNr0}, s{t0}, 16")
            e(f"s_sub_u32 s{t0}, s{t0}, s{sNr0}")
            e(f"s_min_u32 s{sNr1}, s{t0}, 16")
            e(f"s_lshl_b32 s{srdA+2}, s{sNr0}, 12")
            e(f"s_lshl_b32 s{srdB+2}, s{sNr1}, 12")
        base = sKb if kind == "K" else sVb
        voff = vKoff if kind == "K" else vVoff
        e(f"s_mov_b32 m0, s{slot_sgpr}")
        e(f"s_add_u32 s{srdA}, s{base}, s{sOff0}")
        e(f"s_addc_u32 s{srdA+1}, s{base+1}, 0")
        e(f"s_add_u32 s{srdB}, s{base}, s{sOff1}")
        e(f"s_addc_u32 s{srdB+1}, s{base+1}, 0")
        for k in range(4):
            e(f"buffer_load_dwordx4 v{voff+k}, {sr(srdA,4)}, 0 offen offset:{1024*k}{pol} lds")
        e(f"s_add_u32 m0, s{slot_sgpr}, 4096")
        if kind == "V":
            e(f"s_add_u32 s{sPG}, s{sPG}, 1")
        else:
            e("s_nop 0")
        for k in range(4):
            e(f"buffer_load_dwordx4 v{voff+k}, {sr(srdB,4)}, 0 offen offset:{1024*k}{pol} lds")
        e(f"{lab}:")

    def adv_slot():
        e(f"s_add_u32 s{sSlot}, s{sSlot}, 8192")
        e(f"s_cmp_eq_u32 s{sSlot}, s{sRingEnd}")
        e(f"s_cselect_b32 s{sSlot}, s{sRing0}, s{sSlot}")

    tails = []

    def wait_item(kind):
        sub = 1 if kind == "K" else 2
        lmin = (NS - 1 + sub + 1) // 2
        e(f"s_cmp_lt_u32 s{sLeft}, {lmin}")
        e(f"s_cbranch_scc1 L_slow{kind}")
        e(f"s_waitcnt vmcnt({8*(NS-1)})")
        e(f"L_go{kind}:")
        t = [f"L_slow{kind}:"]
        for left in range(lmin - 1, 1, -1):
            t.append(f"s_waitcnt vmcnt({8*(2*left-sub)})")
            t.append(f"s_cmp_eq_u32 s{sLeft}, {left}")
            t.append(f"s_cbranch_scc1 L_go{kind}")
        t.append(f"s_waitcnt vmcnt({8*(2-sub)})")
        t.append(f"s_branch L_go{kind}")
        tails.extend(t)

    e("s_nop 0")
    for i in range(NS):
        issue("K" if i % 2 == 0 else "V", sSlot)
        adv_slot()
    e(f"s_cmp_eq_u32 s{sLeft}, 0")
    e("s_cbranch_scc1 L_loop_done")

    def write_partial(region_sgpr, ks, o_sgpr_off):
        e(f"v_mov_b32 v{vT0}, v{vL}")
        e(f"s_lshl_b32 s{t0}, s{sW}, 9")
        e(f"s_add_u32 s{t0}, s{t0}, s{o_sgpr_off}")
        e(f"v_permlane32_swap_b32 v{vT0}, v{vL}")
        e(f"v_add_u32 v{vT1}, s{t0}, v{vLane8}")
        e(f"v_add_f32 v{vL}, v{vL}, v{vT0}")
        e(f"ds_write_b64 v{vT1}, {vr(vM,2)}")
        for k in ks:
            e(f"s_add_u32 s{t0}, s{sW}, {k}")
            e(f"s_and_b32 s{t0}, s{t0}, 3")
            e(f"s_lshl_b32 s{t0}, s{t0}, 12")
            e(f"s_add_u32 s{t0}, s{t0}, s{region_sgpr}")
            e(f"v_add_u32 v{vKa+k}, s{t0}, v{vLane16}")
            for qd in range(4):
                e(f"ds_write_b128 v{vKa+k}, {vr(vO+16*k+4*qd,4)} offset:{1024*qd}")

    e(".p2align 6") if False else None
    e("L_loop:")
    wait_item("K")
    e(f"v_add_u32 v{vKa}, s{sSlot}, v{vKrd}")
    for j in range(1, 8):
        e(f"v_xor_b32 v{vKa+j}, {32*j}, v{vKa}")
    if not a.nocomp:
        for j in range(8):
            e(f"ds_read_b128 {vr(vK+4*j,4)}, v{vKa+j}")
    e(f"s_cmp_eq_u32 s{sFirst}, 1")
    e("s_cbranch_scc1 L_first")
    e("L_first_done:")
    e(f"s_cmp_eq_u32 s{sG}, s{sSw}")
    e("s_cbranch_scc1 L_switch")
    e("L_switch_done:")
    e(f"s_sub_u32 s{t0}, s{sG}, s{sT1}")
    e(f"s_cmp_lt_u32 s{sG}, s{sT1}")
    e(f"s_cselect_b32 s{t0}, s{sG}, s{t0}")
    e(f"s_cselect_b32 s{t1}, s{sCl1}, s{sCl2}")
    e(f"s_lshl_b32 s{t0}, s{t0}, 5")
    e(f"s_sub_u32 s{sValid}, s{t1}, s{t0}")
    e("s_waitcnt lgkmcnt(0)")
    issue("K" if NS % 2 == 0 else "V", sSlot)
    adv_slot()
    if not a.nocomp:
        for j in range(8):
            cin = "0" if j == 0 else vr(vS, 16)
            e(f"v_mfma_f32_32x32x16_bf16 {vr(vS,16)}, {vr(vK+4*j,4)}, {vr(vQ1+4*j,4)}, {cin}")
        for k in range(4):
            e(f"v_add_u32 v{vVa+k}, s{sSlot}, v{vVrd+k}")
        e(f"s_cmp_lt_u32 s{sValid}, 32")
        e("s_nop 6")
        e("s_cbranch_scc1 L_mask")
        e("L_mask_done:")
        e(f"v_max3_f32 v{vT0}, v{vS}, v{vS+1}, v{vS+2}")
        e(f"v_max3_f32 v{vT1}, v{vS+3}, v{vS+4}, v{vS+5}")
        e(f"v_max3_f32 v{vT0}, v{vT0}, v{vS+6}, v{vS+7}")
        e(f"v_max3_f32 v{vT1}, v{vT1}, v{vS+8}, v{vS+9}")
        e(f"v_max3_f32 v{vT0}, v{vT0}, v{vS+10}, v{vS+11}")
        e(f"v_max3_f32 v{vT1}, v{vT1}, v{vS+12}, v{vS+13}")
        e(f"v_max3_f32 v{vT0}, v{vT0}, v{vS+14}, v{vS+15}")
        e(f"v_max3_f32 v{vT0}, v{vT0}, v{vT1}, v{vM}")
        e(f"v_mov_b32 v{vT1}, v{vT0}")
        e("s_nop 1")
        e(f"v_permlane32_swap_b32 v{vT1}, v{vT0}")
        e(f"v_max_f32 v{vT0}, v{vT0}, v{vT1}")
        e(f"v_sub_f32 v{vT1}, v{vM}, v{vT0}")
        e(f"v_mul_f32 v{vT1}, s{sC}, v{vT1}")
        e(f"v_exp_f32 v1, v{vT1}")
        e(f"v_mov_b32 v{vM}, v{vT0}")
        e(f"v_mul_f32 v{vT0}, s{sC}, v{vT0}")
        for i in range(16):
            e(f"v_fma_f32 v{vS+i}, v{vS+i}, s{sC}, -v{vT0}")
        for i in range(16):
            e(f"v_exp_f32 v{vS+i}, v{vS+i}")
        e(f"v_mul_f32 v{vL}, v{vL}, v1")
        for i in range(64):
            e(f"v_mul_f32 v{vO+i}, v{vO+i}, v1")
        e(f"v_add_f32 v{vT0}, v{vS}, v{vS+1}")
        e(f"v_add_f32 v{vT1}, v{vS+2}, v{vS+3}")
        for i in range(4, 16, 2):
            e(f"v_add_f32 v{vT0}, v{vT0}, v{vS+i}")
            e(f"v_add_f32 v{vT1}, v{vT1}, v{vS+i+1}")
        for y in range(8):
            e(f"v_cvt_pk_bf16_f32 v{vP+y}, v{vS+2*y}, v{vS+2*y+1}")
        e(f"v_add_f32 v{vL}, v{vL}, v{vT0}")
        e(f"v_add_f32 v{vL}, v{vL}, v{vT1}")
    wait_item("V")
    if not a.nocomp:
        for k in range(4):
            for m in range(2):
                for ip in range(2):
                    e(f"ds_read_b64_tr_b16 {vr(vV+8*k+4*m+2*ip,2)}, v{vVa+k} offset:{4096*m+2048*ip}")
    e("s_waitcnt lgkmcnt(0)")
    issue("V" if NS % 2 == 0 else "K", sSlot)
    adv_slot()
    if not a.nocomp:
        for m in range(2):
            for k in range(4):
                e(f"v_mfma_f32_32x32x16_bf16 {vr(vO+16*k,16)}, {vr(vV+8*k+4*m,4)}, {vr(vP+4*m,4)}, {vr(vO+16*k,16)}")
    e(f"s_add_u32 s{sG}, s{sG}, 1")
    e(f"s_sub_u32 s{sLeft}, s{sLeft}, 1")
    e(f"s_cmp_lg_u32 s{sLeft}, 0")
    e("s_cbranch_scc1 L_loop")
    e("L_loop_done:")
    if a.diag:
        e(f"s_memrealtime {sr(sTs+4,2)}")
    e("s_waitcnt vmcnt(0)")
    e(f"s_cmp_lt_u32 s{sW}, s{sN1}")
    e(f"s_cselect_b32 s{t5}, {STAT}, {STAT+2048}") if False else None
    e(f"s_cselect_b32 s{t5}, 0, 2048")
    e(f"s_add_u32 s{t5}, s{t5}, {STAT}")
    e("s_nop 7")
    write_partial(sRing0, (1, 2, 3), t5)
    acc = vK
    buf = vQ1
    xb = vV
    st = vS
    for i in range(32):
        e(f"v_mov_b32 v{acc+i}, 0")
    e(f"s_lshl_b32 s{t0}, s{sW}, 12")
    e(f"v_add_u32 v{vT0}, s{t0}, v{vLane16}")
    e(f"v_add_u32 v{vT1}, {STAT}, v{vLane8}")
    e("s_waitcnt lgkmcnt(0)")
    e("s_barrier")
    for i in range(8):
        e(f"ds_read_b64 {vr(st+2*i,2)}, v{vT1} offset:{512*i}")
    for w in range(4):
        e(f"s_cmp_eq_u32 s{sW}, {w}")
        e(f"s_cbranch_scc1 L_own{w}")
        if w * RB + 3072 <= 65535:
            for qd in range(4):
                e(f"ds_read_b128 {vr(buf+16*w+4*qd,4)}, v{vT0} offset:{w*RB+1024*qd}")
        else:
            e(f"v_add_u32 v1, {w*RB}, v{vT0}")
            for qd in range(4):
                e(f"ds_read_b128 {vr(buf+16*w+4*qd,4)}, v1 offset:{1024*qd}")
        e(f"L_own{w}_done:")
        t = [f"L_own{w}:"]
        for i in range(16):
            t.append(f"v_mov_b32 v{buf+16*w+i}, v{vO+i}")
        t.append(f"s_branch L_own{w}_done")
        tails.extend(t)
    e(f"s_cmp_eq_u32 s{sHasX}, 0")
    e("s_cbranch_scc1 L_nox1")
    e(f"v_add_u32 v1, {XOFF}, v{vT0}")
    for qd in range(4):
        e(f"ds_read_b128 {vr(xb+4*qd,4)}, v1 offset:{1024*qd}")
    e("L_nox1:")
    e("s_waitcnt lgkmcnt(0)")
    for o in range(2):
        m = [st + 8 * o + 2 * w for w in range(4)]
        l = [x + 1 for x in m]
        e(f"v_max3_f32 v1, v{m[0]}, v{m[1]}, v{m[2]}")
        e(f"v_max_f32 v1, v1, v{m[3]}")
        for w in range(4):
            e(f"v_sub_f32 v{m[w]}, v{m[w]}, v1")
        for w in range(4):
            e(f"v_mul_f32 v{m[w]}, s{sC}, v{m[w]}")
        for w in range(4):
            e(f"v_exp_f32 v{m[w]}, v{m[w]}")
        e("s_nop 0")
        e(f"v_mul_f32 v2, v{m[0]}, v{l[0]}")
        for w in range(1, 4):
            e(f"v_fma_f32 v2, v{m[w]}, v{l[w]}, v2")
        e("v_rcp_f32 v2, v2")
        e("s_nop 0")
        for w in range(4):
            e(f"v_mul_f32 v{m[w]}, v{m[w]}, v2")
    for w in range(4):
        if w < 3:
            e(f"s_cmp_gt_u32 s{sN1}, {w}")
            e(f"s_cbranch_scc1 L_acc0_{w}")
        for i in range(16):
            e(f"v_fma_f32 v{acc+16+i}, v{buf+16*w+i}, v{st+8+2*w}, v{acc+16+i}")
        e(f"s_cmp_eq_u32 s{sN1}, {w}")
        e(f"s_cselect_b32 s{t0}, s{sHasX}, 0")
        e(f"s_cmp_eq_u32 s{t0}, 0")
        e(f"s_cbranch_scc1 L_acc_done{w}")
        for i in range(16):
            e(f"v_fma_f32 v{acc+i}, v{xb+i}, v{st+2*w}, v{acc+i}")
        e(f"L_acc_done{w}:")
        if w < 3:
            t = [f"L_acc0_{w}:"]
            for i in range(16):
                t.append(f"v_fma_f32 v{acc+i}, v{buf+16*w+i}, v{st+2*w}, v{acc+i}")
            t.append(f"s_branch L_acc_done{w}")
            tails.extend(t)
    e("v_and_b32 v1, 31, v0")
    e("v_lshlrev_b32 v1, 8, v1")
    e(f"v_lshl_add_u32 v1, v{vH4}, 2, v1")
    e(f"s_lshl_b32 s{t0}, s{sW}, 6")
    e(f"v_add_u32 v1, s{t0}, v1")
    pk = vO
    for o in range(2):
        for y in range(8):
            e(f"v_cvt_pk_bf16_f32 v{pk+8*o+y}, v{acc+16*o+2*y}, v{acc+16*o+2*y+1}")
    e("s_nop 1")
    opol = (" " + a.opol) if a.opol else ""
    for o in range(2):
        for ii in range(2):
            b = pk + 8 * o + 4 * ii
            e(f"v_permlane32_swap_b32 v{b}, v{b+2}")
            e(f"v_permlane32_swap_b32 v{b+1}, v{b+3}")
    for o in range(2):
        for ii in range(2):
            b = pk + 8 * o + 4 * ii
            e(f"buffer_store_dwordx4 {vr(b,4)}, v1, {sr(srdO,4)}, s{sB1 if o == 0 else sB2} offen offset:{32*ii}{opol}")
    if a.diag:
        e("s_waitcnt vmcnt(0)")
        e(f"s_memrealtime {sr(sTs+6,2)}")
        e(f"s_getreg_b32 s{t1}, hwreg(HW_REG_XCC_ID)")
        e(f"s_getreg_b32 s{t2}, hwreg(HW_REG_HW_ID)")
        e(f"s_lshl_b32 s{t0}, s2, 2")
        e(f"s_add_u32 s{t0}, s{t0}, s{sW}")
        e(f"s_lshl_b32 s{t0}, s{t0}, 6")
        e("s_waitcnt lgkmcnt(0)")
        e(f"v_mov_b32 v1, s{t0}")
        for i in range(8):
            e(f"v_mov_b32 v{4+i}, s{sTs+i}")
        e(f"v_mov_b32 v12, s{t1}")
        e(f"v_mov_b32 v13, s{t2}")
        e(f"v_mov_b32 v14, s{sN}")
        e(f"v_mov_b32 v15, 0")
        e("s_mov_b64 exec, 1")
        e(f"global_store_dwordx4 v1, v[4:7], {sr(sWs,2)}")
        e(f"global_store_dwordx4 v1, v[8:11], {sr(sWs,2)} offset:16")
        e(f"global_store_dwordx4 v1, v[12:15], {sr(sWs,2)} offset:32")
    e("L_end:")
    e("s_endpgm")

    for s in tails:
        e(s)
    e("L_first:")
    e(f"s_mov_b32 s{sFirst}, 0")
    if a.diag:
        e(f"s_memrealtime {sr(sTs+2,2)}")
        e("s_waitcnt lgkmcnt(0)")
    e(f"s_cmp_eq_u32 s{sZ1}, 0")
    e("s_cbranch_scc1 L_nz1")
    for i in range(32):
        e(f"v_mov_b32 v{vQ1+i}, 0")
    e("L_nz1:")
    e(f"s_cmp_eq_u32 s{sZ2}, 0")
    e("s_cbranch_scc1 L_first_done")
    for i in range(32):
        e(f"v_mov_b32 v{vQ2+i}, 0")
    e("s_branch L_first_done")

    e("L_switch:")
    e(f"s_cmp_eq_u32 s{sLeft}, s{sN}")
    e("s_cbranch_scc1 L_switch_q")
    e(f"s_mov_b32 s{t5}, {STAT}")
    e(f"s_mov_b32 s{t4}, {XOFF}")
    e("s_waitcnt lgkmcnt(0)")
    write_partial(t4, (0, 1, 2, 3), t5)
    e("s_waitcnt lgkmcnt(0)")
    e(f"v_mov_b32 v{vM}, 0xff800000")
    e(f"v_mov_b32 v{vL}, 0")
    for i in range(64):
        e(f"v_mov_b32 v{vO+i}, 0")
    e("L_switch_q:")
    for i in range(32):
        e(f"v_mov_b32 v{vQ1+i}, v{vQ2+i}")
    e("s_branch L_switch_done")

    if not a.nocomp:
        e("L_mask:")
        e(f"v_sub_u32 v{vT0}, s{sValid}, v{vH4}")
        e(f"v_mov_b32 v{vT1}, 0xff800000")
        for r in range(16):
            e(f"v_cmp_lt_i32 vcc, {8*(r>>2)+(r&3)}, v{vT0}")
            e("s_nop 1")
            e(f"v_cndmask_b32 v{vS+r}, v{vT1}, v{vS+r}, vcc")
        e("s_branch L_mask_done")

    body = "\n".join(x for x in g.L if x is not None)
    out = HEADER
    out += f"; @launch grid=(256,1,1) block=(256,1,1) lds={LDS}\n"
    out += '.amdgcn_target "amdgcn-amd-amdhsa--gfx950"\n.text\n'
    out += f".globl {NAME}_kernel\n.p2align 8\n.type {NAME}_kernel,@function\n"
    out += body + "\n"
    out += f""".section .rodata,"a"
.p2align 6
.amdhsa_kernel {NAME}_kernel
  .amdhsa_next_free_vgpr 256
  .amdhsa_next_free_sgpr 96
  .amdhsa_accum_offset 256
  .amdhsa_group_segment_fixed_size 0
  .amdhsa_kernarg_size 64
  .amdhsa_user_sgpr_count 2
  .amdhsa_user_sgpr_kernarg_segment_ptr 1
  .amdhsa_system_sgpr_workgroup_id_x 1
.end_amdhsa_kernel
"""
    return out


def main():
    p = argparse.ArgumentParser()
    p.add_argument("-o", default=None)
    p.add_argument("--ns", type=int, default=4)
    p.add_argument("--pol", default="nt")
    p.add_argument("--opol", default="")
    p.add_argument("--map", type=int, default=0)
    p.add_argument("--diag", action="store_true")
    p.add_argument("--nocomp", action="store_true")
    a = p.parse_args()
    s = gen(a)
    if a.o:
        open(a.o, "w").write(s)
    else:
        sys.stdout.write(s)


if __name__ == "__main__":
    main()
```
